```python
import torch

def _softmax(x, axis=-1):
    return torch.softmax(x, dim=axis)

def _gelu(x):
    return torch.nn.functional.gelu(x, approximate='tanh')

def _silu(x):
    return torch.nn.functional.silu(x)

def _sigmoid(x):
    return torch.sigmoid(x)

def _layernorm(x, axis=-1, eps=1e-05):
    m = x.mean(dim=axis, keepdim=True)
    v = x.var(dim=axis, keepdim=True, unbiased=False)
    return (x - m) / torch.sqrt(v + eps)

def _scatter_add(tgt, idx, src, axis=0):
    return tgt.clone().index_add_(axis, idx, src)

def _segment_sum(src, seg, n):
    out = torch.zeros((n,) + src.shape[1:], dtype=src.dtype)
    return out.index_add_(0, seg, src)

def _pad(x, pw):
    flat = tuple((v for pair in reversed(pw) for v in pair))
    return torch.nn.functional.pad(x, flat)
kernel_name = 'adaLN_cond__sliding_block_cached__glu_gated_geglu__decode'

def setup_inputs():

    _w = lambda a: (lambda t: t.to(torch.bfloat16) if t.is_floating_point() else t)(torch.as_tensor(a))

    def _A_setup():
        B, Sq, D = (1, 1, 512)
        Hq, Hkv, Sk, Dh = (32, 8, 65536, 128)
        assert Hq % Hkv == 0, (Hq, Hkv)
        return {'x': _w((lambda *s: torch.randn(*s, dtype=torch.bfloat16) * 0.05)(B, Sq, D)), 'k_cache': _w((lambda *s: torch.randn(*s, dtype=torch.bfloat16) * 0.8)(B, Hkv, Sk, Dh)), 'v_cache': _w((lambda *s: torch.randn(*s, dtype=torch.bfloat16) * 3.2)(B, Hkv, Sk, Dh)), 'wq': _w((lambda *s: torch.randn(*s, dtype=torch.bfloat16) * 0.8)(D, Hq * Dh) * D ** (-0.5)), 'wo': _w((lambda *s: torch.randn(*s, dtype=torch.bfloat16) * 3.2)(Hq * Dh, D) * (Hq * Dh) ** (-0.5))}
    _A_in = _A_setup()

    def _B_setup():
        B, S, Dm, Df = (1, 1, 512, 1792)
        return {'x': _w((lambda *s: torch.randn(*s, dtype=torch.bfloat16) * 0.05)(B, S, Dm)), 'w_gate': _w((lambda *s: torch.randn(*s, dtype=torch.bfloat16) * 3.2)(Dm, Df) * Dm ** (-0.5)), 'w_up': _w((lambda *s: torch.randn(*s, dtype=torch.bfloat16) * 3.2)(Dm, Df) * Dm ** (-0.5)), 'w_down': _w((lambda *s: torch.randn(*s, dtype=torch.bfloat16) * 3.2)(Df, Dm) * Df ** (-0.5))}
    _B_in = _B_setup()
    return {'A_x': _A_in['x'], 'A_k_cache': _A_in['k_cache'], 'A_v_cache': _A_in['v_cache'], 'A_wq': _A_in['wq'], 'A_wo': _A_in['wo'], 'B_x': _B_in['x'], 'B_w_gate': _B_in['w_gate'], 'B_w_up': _B_in['w_up'], 'B_w_down': _B_in['w_down'], 'c': _w((lambda *s: torch.randn(*s, dtype=torch.bfloat16) * 0.4)(1, 512) * 8.0), 'w_mod': _w((lambda *s: torch.randn(*s, dtype=torch.bfloat16) * 0.4)(512, 6 * 512) * 512 ** (-0.5) * 8.0)}

def reference(A_x, A_k_cache, A_v_cache, A_wq, A_wo, B_x, B_w_gate, B_w_up, B_w_down, c, w_mod):

    def _A_ref(x, k_cache, v_cache, wq, wo):
        B, Sq, D = x.shape
        Hq, Dh = (32, 128)
        Hkv, Sk = (k_cache.shape[1], k_cache.shape[2])
        W = min(4096, max(256, Sk // 4))
        rep = Hq // Hkv
        q = (lambda x, *d: x.permute(*d))((x @ wq).reshape(B, Sq, Hq, Dh), 0, 2, 1, 3)
        k = (lambda x, n, axis: torch.repeat_interleave(x, n, dim=axis))(k_cache[:, :, Sk - W:, :], rep, axis=1)
        v = (lambda x, n, axis: torch.repeat_interleave(x, n, dim=axis))(v_cache[:, :, Sk - W:, :], rep, axis=1)
        scores = torch.einsum('bhqd,bhkd->bhqk', q, k) * Dh ** (-0.5)
        p = _softmax(scores, axis=-1)
        o = torch.einsum('bhqk,bhkd->bhqd', p, v)
        return (lambda x, *d: x.permute(*d))(o, 0, 2, 1, 3).reshape(B, Sq, Hq * Dh) @ wo

    def _B_ref(x, w_gate, w_up, w_down):
        g = torch.einsum('bsd,df->bsf', x, w_gate)
        u = torch.einsum('bsd,df->bsf', x, w_up)
        h = _gelu(g) * u
        return torch.einsum('bsf,fd->bsd', h, w_down)
    x = A_x
    mod = (_silu(c) @ w_mod).reshape(c.shape[0], 6, 1, -1)
    sa, ca, ga, sb, cb, gb = (mod[:, 0].clone(), mod[:, 1].clone(), mod[:, 2].clone(), mod[:, 3].clone(), mod[:, 4].clone(), mod[:, 5].clone())
    h = _layernorm(x, axis=-1) * (1 + ca) + sa
    x = x + ga * _A_ref(h, A_k_cache, A_v_cache, A_wq, A_wo)
    h = _layernorm(x, axis=-1) * (1 + cb) + sb
    x = x + gb * _B_ref(h, B_w_gate, B_w_up, B_w_down)
    return x
```

```python
import re

TRANS = ('v_exp_f32', 'v_log_f32', 'v_rcp_f32', 'v_rsq_f32', 'v_sqrt_f32', 'v_sin_f32', 'v_cos_f32')


def _regs(tok):
    tok = tok.strip()
    neg = tok.startswith('-')
    if neg:
        tok = tok[1:]
    m = re.fullmatch(r'abs\((.*)\)', tok) or re.fullmatch(r'\|(.*)\|', tok)
    if m:
        tok = m.group(1)
    m = re.fullmatch(r'([vsa])(\d+)', tok)
    if m:
        return [(m.group(1), int(m.group(2)))]
    m = re.fullmatch(r'([vsa])\[(\d+):(\d+)\]', tok)
    if m:
        return [(m.group(1), i) for i in range(int(m.group(2)), int(m.group(3)) + 1)]
    if tok == 'vcc':
        return [('x', 'vcc')]
    if tok in ('exec', 'exec_lo', 'exec_hi'):
        return [('x', 'exec')]
    if tok == 'm0':
        return [('x', 'm0')]
    return []


class Ins:
    __slots__ = ('text', 'mn', 'cls', 'wr', 'rd', 'srcC', 'dpp', 'ws', 'storedata', 'lanesel')


def parse(text):
    ins = Ins()
    ins.text = text
    t = text.split(';')[0].strip()
    parts = t.split(None, 1)
    mn = parts[0]
    ins.mn = mn
    rest = parts[1] if len(parts) > 1 else ''
    ops = []
    depth = 0
    cur = ''
    for ch in rest:
        if ch == '[' or ch == '(':
            depth += 1
        if ch == ']' or ch == ')':
            depth -= 1
        if ch == ',' and depth == 0:
            ops.append(cur.strip())
            cur = ''
        else:
            cur += ch
    if cur.strip():
        ops.append(cur.strip())
    mods = ''
    if ops:
        sp = ops[-1].split(None, 1)
        ops[-1] = sp[0]
        if len(sp) > 1:
            mods = sp[1]
    ins.wr = []
    ins.rd = []
    ins.srcC = []
    ins.storedata = []
    ins.lanesel = []
    ins.dpp = ('_dpp' in mn) or ('row_' in mods) or ('quad_perm' in mods)
    ins.ws = 1
    R = [_regs(o) for o in ops]
    if mn == 's_nop':
        ins.cls = 'nop'
        ins.ws = int(ops[0], 0) + 1
    elif mn.startswith('v_mfma'):
        ins.cls = 'mfma'
        ins.wr = R[0]
        ins.rd = R[1] + R[2] + R[3]
        ins.srcC = R[3]
    elif mn.startswith('v_permlane'):
        ins.cls = 'permlane'
        ins.wr = R[0] + R[1]
        ins.rd = R[0] + R[1]
    elif mn.startswith('v_readlane') or mn.startswith('v_readfirstlane'):
        ins.cls = 'readlane'
        ins.wr = R[0]
        ins.rd = R[1]
        if len(R) > 2:
            ins.lanesel = R[2]
            ins.rd = ins.rd + R[2]
    elif mn.startswith('v_cmp'):
        ins.cls = 'valu'
        ins.wr = R[0]
        ins.rd = sum(R[1:], [])
    elif mn.startswith('v_'):
        base = mn.replace('_e32', '').replace('_e64', '').replace('_dpp', '').replace('_sdwa', '')
        ins.cls = 'trans' if base in TRANS else 'valu'
        ins.wr = list(R[0])
        start = 1
        if base in ('v_add_co_u32', 'v_sub_co_u32', 'v_addc_co_u32', 'v_subb_co_u32', 'v_subrev_co_u32'):
            ins.wr += R[1]
            start = 2
        ins.rd = sum(R[start:], [])
        if base in ('v_fmac_f32', 'v_dot2c_f32_bf16', 'v_pk_fmac_f16') or ins.dpp:
            ins.rd = ins.rd + R[0]
        if base == 'v_cndmask_b32' and len(ops) == 3:
            ins.rd.append(('x', 'vcc'))
    elif mn.startswith('ds_'):
        ins.cls = 'ds'
        if mn.startswith('ds_read') or mn.startswith('ds_bpermute') or mn.startswith('ds_permute') or mn.startswith('ds_swizzle'):
            ins.wr = R[0]
            ins.rd = sum(R[1:], [])
        else:
            ins.rd = sum(R, [])
    elif mn.startswith('global_') or mn.startswith('buffer_'):
        ins.cls = 'vmem'
        islds = ('_lds_' in mn) or re.search(r'\blds\b', mods) is not None
        if islds:
            ins.cls = 'vmemlds'
            ins.rd = sum(R, []) + [('x', 'm0')]
        elif '_load_' in mn:
            ins.wr = R[0]
            ins.rd = sum(R[1:], [])
        elif '_store_' in mn:
            ins.rd = sum(R, [])
            data = R[1] if mn.startswith('global_') else R[0]
            if len(data) >= 3:
                ins.storedata = data
        else:
            ins.rd = sum(R, [])
    elif mn.startswith('s_load') or mn.startswith('s_mem') or mn.startswith('s_buffer_load') or mn.startswith('s_atomic'):
        ins.cls = 'smem'
        ins.wr = R[0] if R else []
        ins.rd = sum(R[1:], [])
    elif mn.startswith('s_'):
        ins.cls = 'salu'
        if mn.startswith('s_cmp') or mn.startswith('s_cbranch') or mn in ('s_branch', 's_waitcnt', 's_barrier', 's_endpgm', 's_sleep', 's_setprio'):
            ins.rd = sum(R, [])
        else:
            ins.wr = R[0] if R else []
            ins.rd = sum(R[1:], [])
            if 'saveexec' in mn:
                ins.wr = ins.wr + [('x', 'exec')]
    else:
        raise ValueError('unknown instr ' + text)
    return ins


VALUISH = ('valu', 'trans', 'permlane', 'readlane')


def need(prod, cons):
    n = 0
    pw = set(prod.wr)
    cr = set(cons.rd)
    cw = set(cons.wr)
    raw = pw & cr
    rawv = [x for x in raw if x[0] in ('v', 'a')]
    raws = [x for x in raw if x[0] == 's' or x == ('x', 'vcc')]
    if prod.cls in VALUISH:
        if rawv:
            if cons.cls == 'mfma':
                n = max(n, 2)
            if cons.cls == 'permlane':
                n = max(n, 2)
            if cons.cls == 'readlane':
                n = max(n, 1)
            if cons.dpp:
                n = max(n, 2)
            if prod.cls == 'trans' and cons.cls != 'trans':
                n = max(n, 1)
            if 'sdwa' in prod.mn or 'op_sel' in prod.text:
                n = max(n, 1)
        if raws:
            if cons.cls in VALUISH or cons.cls == 'mfma':
                n = max(n, 2)
            if cons.cls in ('vmem', 'vmemlds'):
                n = max(n, 5)
            if set(cons.lanesel) & pw:
                n = max(n, 4)
        if ('x', 'exec') in pw:
            n = max(n, 5)
    if prod.cls == 'mfma':
        passes4 = '16x16x32' in prod.mn or '16x16x16' in prod.mn
        big = 8 if passes4 else 12
        ovl = 6 if passes4 else 10
        war = 3 if passes4 else 7
        if cons.cls == 'mfma':
            if pw & (set(cons.rd) - set(cons.srcC)):
                n = max(n, big)
            if pw & set(cons.srcC):
                if list(cons.srcC) != list(prod.wr):
                    n = max(n, ovl)
            if (pw & cw) and not (pw & set(cons.srcC)):
                n = max(n, big)
        else:
            if (pw & cr) or (pw & cw):
                n = max(n, big)
            if cons.cls in VALUISH and (set(prod.srcC) & cw):
                n = max(n, war)
    if prod.cls == 'salu' and ('x', 'm0') in pw and cons.cls == 'vmemlds':
        n = max(n, 1)
    if prod.storedata and (set(prod.storedata) & cw):
        n = max(n, 2)
    return n


def worst(prod):
    if prod.cls == 'mfma':
        return 8 if ('16x16x32' in prod.mn or '16x16x16' in prod.mn) else 12
    if prod.cls in VALUISH:
        if any(x[0] == 's' or x == ('x', 'vcc') or x == ('x', 'exec') for x in prod.wr):
            return 5
        return 2
    if prod.cls == 'salu' and ('x', 'm0') in prod.wr:
        return 1
    if prod.storedata:
        return 2
    return 0


class Asm:
    def __init__(self):
        self.out = []
        self.hist = []
        self.nlabel = 0

    def raw(self, s):
        self.out.append(s)

    def _dist_iter(self):
        d = 0
        for p in reversed(self.hist):
            yield p, d
            d += p.ws
            if d > 16:
                break

    def nop(self, n):
        while n > 0:
            k = min(n, 16)
            ins = parse('s_nop %d' % (k - 1))
            self.out.append('  s_nop %d' % (k - 1))
            self.hist.append(ins)
            n -= k

    def I(self, s):
        for line in s.strip().split('\n'):
            line = line.strip()
            if not line or line.startswith(';'):
                if line:
                    self.out.append('  ' + line)
                continue
            ins = parse(line)
            if ins.mn in ('s_branch',) or ins.mn.startswith('s_cbranch'):
                self.flush(1)
            req = 0
            for p, d in self._dist_iter():
                req = max(req, need(p, ins) - d)
            if req > 0:
                self.nop(req)
            self.out.append('  ' + line)
            self.hist.append(ins)
            self.hist = self.hist[-24:]

    def flush(self, credit=0):
        req = 0
        for p, d in self._dist_iter():
            req = max(req, worst(p) - d - credit)
        if req > 0:
            self.nop(req)

    def label(self, name):
        self.flush()
        self.out.append(name + ':')
        self.hist = []

    def newlabel(self, base='L'):
        self.nlabel += 1
        return '%s_%d' % (base, self.nlabel)

    def text(self):
        return '\n'.join(self.out) + '\n'
```

```python
import sys
import struct
from asmlib import Asm

NAME = 'adaLN_cond__sliding_block_cached__glu_gated_geglu__decode'
PROF = '--prof' in sys.argv
OUT = 'cdna_kernels/%s.s' % NAME
for a_ in sys.argv[1:]:
    if a_.startswith('--out='):
        OUT = a_[6:]


def f32(x):
    return '0x%08x' % struct.unpack('<I', struct.pack('<f', x))[0]


LOG2E = 1.4426950408889634
GOFF = 0x400000
R1 = 0x1000
R2 = 0x8000
R3 = 0x9000
R6 = 0xE000
R7 = 0x14000
R5 = 0x20000
R8 = 0x40000
R4 = 0x80000
TS = 0x200000
SPIN_MAX = 400000
LDS_BYTES = 131072

pX, pK, pV, pWQ, pWO, pG, pU, pDN, pC, pWM, pOUT, pDBG, pWS = 8, 10, 12, 14, 16, 20, 22, 24, 26, 28, 30, 32, 34
sG, sR, sW, sTAG = 36, 37, 38, 39
sSEL = 40
sHI = 44
sSPIN = 45
sEP = 46
sWSG = 64
sPB = 66
sM0 = 68
sM1 = 70
sJ0 = 84


def P(n):
    return 's[%d:%d]' % (n, n + 1)


def V(n, k=1):
    return 'v%d' % n if k == 1 else 'v[%d:%d]' % (n, n + k - 1)


A = Asm()
I = A.I
ts_idx = [0]


def stamp(idx):
    if not PROF:
        return
    skip = A.newlabel('L_ts')
    I('s_cmp_lg_u32 s%d, 0' % sW)
    I('s_cbranch_scc1 %s' % skip)
    I('s_memrealtime s[96:97]')
    I('s_lshl_b32 s98, s2, 7')
    I('s_add_u32 s98, s98, %d' % (TS + idx * 8))
    I('s_waitcnt lgkmcnt(0)')
    I('v_mov_b32 v250, s96')
    I('v_mov_b32 v251, s97')
    I('v_mov_b32 v252, s98')
    I('s_mov_b64 s[96:97], exec')
    I('s_mov_b64 exec, 1')
    I('global_store_dwordx2 v252, v[250:251], %s' % P(pWS))
    I('s_mov_b64 exec, s[96:97]')
    A.label(skip)


def srd(d, p, size):
    I('s_mov_b32 s%d, s%d' % (d, p))
    I('s_mov_b32 s%d, s%d' % (d + 1, p + 1))
    I('s_mov_b32 s%d, 0x%x' % (d + 2, size))
    I('s_mov_b32 s%d, 0x20000' % (d + 3))


def S4(d):
    return 's[%d:%d]' % (d, d + 3)


def code_prefetch(lab0, lab1, vtmp, vdst):
    skip = A.newlabel('L_pf')
    I('s_cmp_lg_u32 s%d, 3' % sW)
    I('s_cbranch_scc1 %s' % skip)
    here = A.newlabel('L_pc')
    I('s_getpc_b64 s[72:73]')
    A.raw(here + ':')
    I('v_lshlrev_b32 %s, 7, v1' % V(vtmp))
    I('v_min_u32 %s, %s-%s-4, %s' % (V(vtmp + 1), lab1, here, V(vtmp)))
    I('global_load_dword %s, %s, s[72:73]' % (V(vdst), V(vtmp + 1)))
    I('v_add_u32 %s, 0x2000, %s' % (V(vtmp), V(vtmp)))
    I('v_min_u32 %s, %s-%s-4, %s' % (V(vtmp + 1), lab1, here, V(vtmp)))
    I('global_load_dword %s, %s, s[72:73]' % (V(vdst + 1), V(vtmp + 1)))
    A.label(skip)


def get_tag():
    I('s_waitcnt lgkmcnt(0)')
    I('s_and_b32 s3, s%d, 0x7f7f7f7f' % sEP)
    I('s_add_u32 s3, s3, 0x01010101')
    I('s_and_b32 s%d, s%d, 0x80808080' % (sTAG, sEP))
    I('s_xor_b32 s%d, s%d, s3' % (sTAG, sTAG))
    I('v_mov_b32 v10, s%d' % sTAG)
    I('v_and_b32 v13, 3, v1')
    I('v_lshlrev_b32 v13, 3, v13')
    I('v_lshrrev_b32 v11, v13, v10')
    I('v_and_b32 v13, 1, v1')
    I('v_lshlrev_b32 v13, 4, v13')
    I('v_lshrrev_b32 v12, v13, v10')


def poll(loads, dual, pre_issued=False, between=None):
    loop = A.newlabel('L_poll')
    done = A.newlabel('L_pdone')
    I('s_mov_b32 s%d, 0' % sSPIN)
    I('s_mov_b64 %s, %s' % (P(sPB), P(pWS)))
    A.label(loop)
    for (dst, n, va, off, tr, tb) in loads:
        mn = {1: 'global_load_dword', 2: 'global_load_dwordx2', 4: 'global_load_dwordx4'}[n]
        I('%s %s, %s, %s offset:%d sc1' % (mn, V(dst, n), V(va), P(sPB), off))
    I('s_add_u32 s%d, s%d, 1' % (sSPIN, sSPIN))
    if dual:
        I('s_and_b32 s3, s%d, 3' % sSPIN)
        I('s_cmp_eq_u32 s3, 3')
        I('s_cselect_b64 %s, %s, %s' % (P(sPB), P(sWSG), P(pWS)))
    I('s_waitcnt vmcnt(0)')
    first = True
    for (dst, n, va, off, tr, tb) in loads:
        for i in range(n):
            tgt = P(sM0) if first else 'vcc'
            I('v_cmp_eq_u32_sdwa %s, %s, %s src0_sel:BYTE_0 src1_sel:BYTE_%d' % (tgt, V(dst + i), V(tr), tb + i))
            if not first:
                I('s_and_b64 %s, %s, vcc' % (P(sM0), P(sM0)))
            first = False
    I('s_cmp_eq_u64 %s, exec' % P(sM0))
    I('s_cbranch_scc1 %s' % done)
    I('s_cmp_lt_u32 s%d, %d' % (sSPIN, SPIN_MAX))
    I('s_cbranch_scc1 %s' % loop)
    A.label(done)


def tagit(dst, src, n, tagreg=10, tb=0):
    for i in range(n):
        I('v_perm_b32 %s, %s, %s, s%d' % (V(dst + i), V(src + i), V(tagreg), sSEL + tb + i))


def rnd(x, tmp=None):
    I('v_cvt_pk_bf16_f32 %s, %s, %s' % (V(x), V(x), V(x)))
    I('v_and_b32 %s, s%d, %s' % (V(x), sHI, V(x)))


def rnd2(a, b, tmp):
    I('v_cvt_pk_bf16_f32 %s, %s, %s' % (V(tmp), V(a), V(b)))
    I('v_lshlrev_b32 %s, 16, %s' % (V(a), V(tmp)))
    I('v_and_b32 %s, s%d, %s' % (V(b), sHI, V(tmp)))


DPPM = 'row_mask:0xf bank_mask:0xf'


def row_allreduce(op, x):
    I('%s_dpp %s, %s, %s quad_perm:[1,0,3,2] %s' % (op, V(x), V(x), V(x), DPPM))
    I('%s_dpp %s, %s, %s quad_perm:[2,3,0,1] %s' % (op, V(x), V(x), V(x), DPPM))
    I('%s_dpp %s, %s, %s row_half_mirror %s' % (op, V(x), V(x), V(x), DPPM))
    I('%s_dpp %s, %s, %s row_mirror %s' % (op, V(x), V(x), V(x), DPPM))


def xrow_allreduce(op, x, t):
    I('v_mov_b32 %s, %s' % (V(t), V(x)))
    I('v_permlane16_swap_b32 %s, %s' % (V(x), V(t)))
    I('%s %s, %s, %s' % (op, V(x), V(x), V(t)))
    I('v_mov_b32 %s, %s' % (V(t), V(x)))
    I('v_permlane32_swap_b32 %s, %s' % (V(x), V(t)))
    I('%s %s, %s, %s' % (op, V(x), V(x), V(t)))


def xrow_reduce4(a):
    I('v_permlane32_swap_b32 %s, %s' % (V(a), V(a + 2)))
    I('v_permlane32_swap_b32 %s, %s' % (V(a + 1), V(a + 3)))
    I('v_add_f32 %s, %s, %s' % (V(a), V(a), V(a + 2)))
    I('v_add_f32 %s, %s, %s' % (V(a + 1), V(a + 1), V(a + 3)))
    I('v_permlane16_swap_b32 %s, %s' % (V(a), V(a + 1)))
    I('v_add_f32 %s, %s, %s' % (V(a), V(a), V(a + 1)))


def mfma(d, a, b, c=None):
    I('v_mfma_f32_16x16x32_bf16 %s, %s, %s, %s' % (V(d, 4), V(a, 4), V(b, 4), '0' if c is None else V(c, 4)))


def silu_pair(src, t0, t1, t2, dst):
    I('v_lshlrev_b32 %s, 16, %s' % (V(t0), V(src)))
    I('v_and_b32 %s, s%d, %s' % (V(t1), sHI, V(src)))
    for (x, t) in ((t0, t2), (t1, t2 + 1)):
        I('v_mul_f32 %s, %s, %s' % (V(t), f32(-LOG2E), V(x)))
        I('v_exp_f32 %s, %s' % (V(t), V(t)))
        I('v_add_f32 %s, 1.0, %s' % (V(t), V(t)))
        I('v_rcp_f32 %s, %s' % (V(t), V(t)))
        I('v_mul_f32 %s, %s, %s' % (V(x), V(x), V(t)))
    I('v_cvt_pk_bf16_f32 %s, %s, %s' % (V(dst), V(t0), V(t1)))


def dma128(srdreg, stride, ninstr, soff_reg, lds_base_expr_sreg, va_even, va_odd):
    I('s_mov_b32 m0, s%d' % lds_base_expr_sreg)
    for i in range(ninstr):
        I('buffer_load_dwordx4 %s, %s, s%d offen nt lds' % (V(va_odd if (i & 1) else va_even), S4(srdreg), soff_reg))
        if i != ninstr - 1:
            I('s_add_u32 m0, m0, 1024')
            I('s_add_u32 s%d, s%d, %d' % (soff_reg, soff_reg, 8 * stride))


def addr128_dma(stride, ve, vo, t):
    I('v_lshrrev_b32 %s, 3, v1' % V(t))
    I('v_mul_u32_u24 %s, %d, %s' % (V(ve), stride, V(t)))
    I('v_and_b32 %s, 2, %s' % (V(t), V(t)))
    I('v_and_b32 %s, 7, v1' % V(t + 1))
    I('v_xor_b32 %s, %s, %s' % (V(t), V(t), V(t + 1)))
    I('v_lshl_add_u32 %s, %s, 4, %s' % (V(ve), V(t), V(ve)))
    I('v_xor_b32 %s, 64, %s' % (V(vo), V(ve)))


def addr128_tr(dst, base, t):
    I('v_lshrrev_b32 %s, 4, v1' % V(t))
    I('v_bfe_u32 %s, v1, 2, 2' % V(t + 1))
    I('v_lshl_add_u32 %s, %s, 3, %s' % (V(dst), V(t), V(t + 1)))
    I('v_lshlrev_b32 %s, 7, %s' % (V(dst), V(dst)))
    I('v_lshrrev_b32 %s, 1, %s' % (V(t + 1), V(t + 1)))
    I('v_and_b32 %s, 1, %s' % (V(t), V(t)))
    I('v_lshl_or_b32 %s, %s, 1, %s' % (V(t), V(t), V(t + 1)))
    I('v_xor_b32 %s, s%d, %s' % (V(t), sW, V(t)))
    I('v_lshl_add_u32 %s, %s, 5, %s' % (V(dst), V(t), V(dst)))
    I('v_and_b32 %s, 3, v1' % V(t))
    I('v_lshl_add_u32 %s, %s, 3, %s' % (V(dst), V(t), V(dst)))
    if base:
        I('v_add_u32 %s, %d, %s' % (V(dst), base, V(dst)))


def gen():
    hdr = open('cdna_kernels/%s.s.ref' % NAME).read().split('\n')
    for l in hdr:
        if l.startswith('; @launch'):
            A.raw('; @launch grid=(256,1,1) block=(256,1,1) lds=%d' % LDS_BYTES)
            break
        A.raw(l)
    A.raw('.amdgcn_target "amdgcn-amd-amdhsa--gfx950"')
    A.raw('.text')
    A.raw('.globl %s_kernel' % NAME)
    A.raw('.p2align 8')
    A.raw('.type %s_kernel,@function' % NAME)
    A.raw('%s_kernel:' % NAME)
    I('s_load_dwordx16 s[8:23], s[0:1], 0')
    I('s_load_dwordx8 s[24:31], s[0:1], 64')
    I('s_load_dwordx4 s[32:35], s[0:1], 96')
    I('s_cmp_ge_u32 s2, 256')
    I('s_cbranch_scc1 L_exit')
    I('v_and_b32 v1, 63, v0')
    I('v_lshrrev_b32 v2, 6, v0')
    I('s_and_b32 s%d, s2, 7' % sG)
    I('s_lshr_b32 s%d, s2, 3' % sR)
    I('v_readfirstlane_b32 s%d, v2' % sW)
    for t in range(4):
        I('s_mov_b32 s%d, 0x%08x' % (sSEL + t, 0x07060500 + t))
    I('s_mov_b32 s%d, 0xffff0000' % sHI)
    I('s_mov_b32 s%d, 0x00010001' % sJ0)
    I('s_mov_b32 s%d, 0x00010001' % (sJ0 + 1))
    I('s_waitcnt lgkmcnt(0)')
    I('s_load_dword s%d, %s, 0' % (sEP, P(pWS)))
    I('s_add_u32 s%d, s%d, 0x%x' % (sWSG, pWS, GOFF))
    I('s_addc_u32 s%d, s%d, 0' % (sWSG + 1, pWS + 1))
    stamp(0)
    I('s_cmp_lt_u32 s%d, 16' % sR)
    I('s_cbranch_scc1 L_T')
    I('s_cmp_lt_u32 s%d, 24' % sR)
    I('s_cbranch_scc1 L_B')
    gen_MH()
    gen_B()
    gen_T()
    A.label('L_exit')
    I('s_endpgm')
    A.raw('L_codeend:')
    A.raw('.section .rodata,"a"')
    A.raw('.p2align 6')
    A.raw('.amdhsa_kernel %s_kernel' % NAME)
    A.raw('  .amdhsa_next_free_vgpr 256')
    A.raw('  .amdhsa_next_free_sgpr 102')
    A.raw('  .amdhsa_accum_offset 256')
    A.raw('  .amdhsa_group_segment_fixed_size 0')
    A.raw('  .amdhsa_kernarg_size 112')
    A.raw('  .amdhsa_user_sgpr_count 2')
    A.raw('  .amdhsa_user_sgpr_kernarg_segment_ptr 1')
    A.raw('  .amdhsa_system_sgpr_workgroup_id_x 1')
    A.raw('  .amdhsa_float_denorm_mode_32 3')
    A.raw('.end_amdhsa_kernel')


def gen_MH():
    LA = 0
    LXA = 16384
    LG = 20480
    LU = LG + 32768
    LD = LU + 32768
    LX2 = LD + 32768
    LXH = LX2 + 1024
    LZ = LXH + 64
    A.label('L_MH')
    code_prefetch('L_MH', 'L_B', 20, 22)
    srd(48, pWM, 512 * 6144)
    I('s_sub_u32 s74, s%d, 24' % sR)
    I('s_and_b32 s75, s74, 1')
    I('s_lshr_b32 s76, s74, 1')
    I('s_lshl_b32 s77, s76, 8')
    I('v_lshl_add_u32 v2, v1, 2, s77')
    I('global_load_dword v3, v2, %s' % P(pC))
    addr128_dma(6144, 4, 5, 6)
    I('s_lshl_b32 s77, s76, 7')
    I('s_lshl_b32 s78, s%d, 5' % sW)
    I('s_add_u32 s77, s77, s78')
    I('s_mul_i32 s77, s77, 6144')
    I('s_lshl_b32 s78, s75, 10')
    I('s_add_u32 s77, s77, s78')
    I('s_lshl_b32 s78, s%d, 7' % sG)
    I('s_add_u32 s77, s77, s78')
    I('s_lshl_b32 s78, s%d, 12' % sW)
    if LA:
        I('s_add_u32 s78, s78, %d' % LA)
    dma128(48, 6144, 4, 77, 78, 4, 5)
    I('v_lshlrev_b32 v2, 4, v1')
    I('global_load_dwordx4 v[24:27], v2, %s' % P(pX))
    I('s_lshl_b32 s77, s%d, 7' % sG)
    I('v_lshl_add_u32 v2, v1, 1, s77')
    I('global_load_ushort v28, v2, %s' % P(pX))
    addr128_tr(7, LA, 8)
    I('v_lshrrev_b32 v8, 4, v1')
    I('v_lshlrev_b32 v8, 4, v8')
    I('v_add_u32 v8, %d, v8' % LXA)
    get_tag()
    I('s_waitcnt vmcnt(6)')
    silu_pair(3, 14, 15, 16, 3)
    I('v_lshlrev_b32 v2, 2, v1')
    I('ds_write_b32 v2, v3 offset:%d' % LXA)
    I('s_waitcnt vmcnt(0) lgkmcnt(0)')
    I('s_barrier')
    for kt in range(4):
        I('ds_read_b64_tr_b16 %s, v7 offset:%d' % (V(32 + kt * 4, 2), kt * 4096))
        I('ds_read_b64_tr_b16 %s, v7 offset:%d' % (V(34 + kt * 4, 2), kt * 4096 + 512))
        I('ds_read_b128 %s, v8 offset:%d' % (V(48 + kt * 4, 4), kt * 64))
    I('s_lshl_b32 s77, s%d, 11' % sG)
    I('s_lshl_b32 s78, s74, 8')
    I('s_add_u32 s77, s77, s78')
    I('s_lshl_b32 s78, s%d, 6' % sW)
    I('s_add_u32 s77, s77, s78')
    I('s_add_u32 s77, s77, %d' % R1)
    I('v_and_b32 v2, 48, v1')
    I('v_add_u32 v2, s77, v2')
    for kt in range(4):
        I('s_waitcnt lgkmcnt(%d)' % (9 - 3 * kt))
        mfma(64, 32 + kt * 4, 48 + kt * 4, None if kt == 0 else 64)
    tagit(68, 64, 4)
    I('s_mov_b64 exec, %s' % P(sJ0))
    I('global_store_dwordx4 v2, v[68:71], %s' % P(pWS))
    I('global_store_dwordx4 v2, v[68:71], %s sc1' % P(sWSG))
    I('s_mov_b64 exec, -1')
    stamp(1)
    I('s_cmp_eq_u32 s%d, 31' % sR)
    I('s_cbranch_scc1 L_H')

    I('s_mul_i32 s79, s%d, 7' % sG)
    I('s_add_u32 s79, s79, s74')
    srd(52, pG, 512 * 3584)
    srd(56, pU, 512 * 3584)
    srd(60, pDN, 1792 * 1024)
    I('v_lshrrev_b32 v6, 2, v1')
    I('v_mul_u32_u24 v4, 3584, v6')
    I('v_lshrrev_b32 v6, 5, v1')
    I('v_and_b32 v9, 3, v1')
    I('v_xor_b32 v6, v6, v9')
    I('v_lshl_add_u32 v4, v6, 4, v4')
    I('v_xor_b32 v5, 32, v4')
    I('s_mul_i32 s77, s%d, %d' % (sW, 128 * 3584))
    I('s_lshl_b32 s78, s79, 6')
    I('s_add_u32 s77, s77, s78')
    I('s_lshl_b32 s78, s%d, 13' % sW)
    I('s_add_u32 s80, s78, %d' % LG)
    I('s_add_u32 s81, s78, %d' % LU)
    for i in range(8):
        I('s_mov_b32 m0, s80')
        I('buffer_load_dwordx4 v4, %s, s77 offen nt lds' % S4(52))
        I('s_mov_b32 m0, s81')
        I('buffer_load_dwordx4 v5, %s, s77 offen nt lds' % S4(56))
        if i != 7:
            I('s_add_u32 s80, s80, 1024')
            I('s_add_u32 s81, s81, 1024')
            I('s_add_u32 s77, s77, %d' % (16 * 3584))
    I('s_lshl_b32 s77, s79, 15')
    I('s_lshl_b32 s78, s%d, 13' % sW)
    I('s_add_u32 s77, s77, s78')
    I('s_add_u32 s80, s78, %d' % LD)
    I('s_and_b32 s78, s%d, 1' % sW)
    I('s_lshl_b32 s78, s78, 7')
    I('v_lshlrev_b32 v6, 4, v1')
    I('v_xor_b32 v6, s78, v6')
    for j in range(4):
        I('v_xor_b32 %s, %d, v6' % (V(14 + j), j * 32))
    for i in range(8):
        I('s_mov_b32 m0, s80')
        I('buffer_load_dwordx4 %s, %s, s77 offen nt lds' % (V(14 + (i & 3)), S4(60)))
        if i != 7:
            I('s_add_u32 s80, s80, 1024')
            I('s_add_u32 s77, s77, 1024')
    I('v_mov_b32 v2, 0')
    I('v_lshlrev_b32 v3, 2, v1')
    I('v_and_b32 v3, 63, v3')
    I('v_add_u32 v3, %d, v3' % LZ)
    I('ds_write_b32 v3, v2')
    I('v_lshrrev_b32 v2, 4, v1')
    I('v_bfe_u32 v3, v1, 2, 2')
    I('v_lshl_add_u32 v9, v2, 3, v3')
    I('v_lshlrev_b32 v7, 6, v9')
    I('v_bfe_u32 v18, v1, 1, 1')
    I('v_lshl_add_u32 v7, v18, 15, v7')
    I('v_and_b32 v19, 1, v2')
    I('v_lshl_or_b32 v19, v18, 1, v19')
    I('v_xor_b32 v19, s%d, v19' % sW)
    I('v_lshl_add_u32 v7, v19, 4, v7')
    I('v_and_b32 v19, 1, v1')
    I('v_lshl_add_u32 v7, v19, 3, v7')
    I('v_add_u32 v7, %d, v7' % LG)
    I('v_and_b32 v19, 1, v2')
    I('v_lshl_or_b32 v19, v19, 2, v3')
    I('v_lshlrev_b32 v8, 10, v9')
    I('v_lshl_add_u32 v8, v19, 5, v8')
    I('v_and_b32 v19, 3, v1')
    I('v_lshl_add_u32 v8, v19, 3, v8')
    I('s_lshl_b32 s78, s%d, 8' % sW)
    I('s_add_u32 s78, s78, %d' % LD)
    I('v_add_u32 v8, s78, v8')
    I('v_lshrrev_b32 v19, 5, v1')
    I('v_lshlrev_b32 v19, 9, v19')
    I('v_and_b32 v20, 31, v1')
    I('v_lshl_add_u32 v19, v20, 3, v19')
    I('s_lshl_b32 s78, s%d, 10' % sW)
    I('s_add_u32 s78, s78, %d' % (R7 + 8 * 512))
    I('v_add_u32 v19, s78, v19')
    I('v_add_u32 v20, 4096, v19')
    I('s_waitcnt vmcnt(0) lgkmcnt(0)')
    I('s_barrier')
    stamp(2)
    for kt in range(16):
        I('ds_read_b64_tr_b16 %s, v7 offset:%d' % (V(32 + kt * 4, 2), kt * 2048))
        I('ds_read_b64_tr_b16 %s, v7 offset:%d' % (V(34 + kt * 4, 2), kt * 2048 + 256))
        if kt % 4 == 3:
            I('s_waitcnt lgkmcnt(0)')
    for j in range(8):
        I('v_xor_b32 v2, %d, v8' % (j * 32))
        I('ds_read_b64_tr_b16 %s, v2' % V(96 + j * 4, 2))
        I('ds_read_b64_tr_b16 %s, v2 offset:4096' % V(98 + j * 4, 2))
        if j % 4 == 3:
            I('s_waitcnt lgkmcnt(0)')
    poll([(128, 2, 19, 0, 12, 0), (130, 2, 19, 256, 12, 0), (132, 2, 20, 0, 12, 0), (134, 2, 20, 256, 12, 0)], False)
    I('v_add_f32 v128, v128, v130')
    I('v_add_f32 v129, v129, v131')
    I('v_add_f32 v132, v132, v134')
    I('v_add_f32 v133, v133, v135')
    rnd2(128, 129, 136)
    rnd2(132, 133, 136)
    I('v_add_f32 v132, 1.0, v132')
    I('v_add_f32 v133, 1.0, v133')
    rnd2(132, 133, 136)
    I('s_lshl_b32 s78, s%d, 11' % sG)
    I('s_add_u32 s78, s78, %d' % R6)
    I('v_lshl_add_u32 v19, v1, 5, s78')
    I('s_lshl_b32 s77, s%d, 9' % sW)
    I('s_add_u32 s78, s78, s77')
    I('v_lshl_add_u32 v20, v1, 3, s78')
    I('s_lshl_b32 s77, s%d, 8' % sW)
    I('s_add_u32 s77, s77, %d' % LX2)
    I('v_lshl_add_u32 v21, v1, 2, s77')
    I('v_and_b32 v22, 48, v1')
    I('v_add_u32 v22, %d, v22' % LX2)
    I('v_bfe_u32 v2, v1, 4, 1')
    I('v_lshlrev_b32 v23, 3, v2')
    I('v_lshrrev_b32 v2, 5, v1')
    I('v_lshl_add_u32 v23, v2, 1, v23')
    I('s_lshl_b32 s77, s%d, 4' % sW)
    I('s_add_u32 s77, s77, %d' % LXH)
    I('v_add_u32 v23, s77, v23')
    I('v_and_b32 v2, 15, v1')
    I('v_and_b32 v3, 48, v1')
    I('v_add_u32 v3, %d, v3' % LXH)
    I('v_mov_b32 v9, %d' % LZ)
    for j in range(8):
        I('v_cmp_eq_u32 vcc, %d, v2' % j)
        I('v_cndmask_b32 %s, v9, v3, vcc' % V(140 + j))
    I('v_lshrrev_b32 v9, 1, v2')
    I('v_lshlrev_b32 v9, 13, v9')
    I('v_and_b32 v2, 1, v2')
    I('v_lshl_add_u32 v9, v2, 6, v9')
    I('v_and_b32 v2, 48, v1')
    I('v_add_u32 v9, v9, v2')
    I('s_lshl_b32 s77, s%d, 15' % sW)
    I('s_lshl_b32 s78, s79, 7')
    I('s_add_u32 s77, s77, s78')
    I('s_add_u32 s77, s77, %d' % R8)
    I('v_add_u32 v9, s77, v9')
    stamp(3)
    poll([(150, 4, 19, 0, 10, 0), (154, 4, 19, 16, 10, 0), (158, 2, 20, 0, 12, 0)], True)
    stamp(4)
    for i in range(10):
        I('v_and_b32 %s, s%d, %s' % (V(150 + i), sHI, V(150 + i)))
    I('v_readfirstlane_b32 s77, v150')
    for i in range(8):
        I('v_subrev_f32 %s, s77, %s' % (V(150 + i), V(150 + i)))
    I('v_add_f32 v160, v150, v151')
    I('v_mul_f32 v161, v150, v150')
    I('v_fmac_f32 v161, v151, v151')
    for i in range(2, 8):
        I('v_add_f32 v160, v160, %s' % V(150 + i))
        I('v_fmac_f32 v161, %s, %s' % (V(150 + i), V(150 + i)))
    row_allreduce('v_add_f32', 160)
    row_allreduce('v_add_f32', 161)
    I('v_permlane32_swap_b32 v160, v161')
    I('v_add_f32 v160, v160, v161')
    I('v_mov_b32 v161, v160')
    I('v_permlane16_swap_b32 v160, v161')
    I('v_add_f32 v160, v160, v161')
    I('v_readlane_b32 s78, v160, 0')
    I('v_readlane_b32 s80, v160, 32')
    ln_finish(77, 78, 80, 162)
    for x in (158, 159):
        I('v_sub_f32 %s, %s, v162' % (V(x), V(x)))
    rnd2(158, 159, 164)
    for x in (158, 159):
        I('v_mul_f32 %s, %s, v163' % (V(x), V(x)))
    rnd2(158, 159, 164)
    I('v_mul_f32 v158, v158, v132')
    I('v_mul_f32 v159, v159, v133')
    rnd2(158, 159, 164)
    I('v_add_f32 v158, v158, v128')
    I('v_add_f32 v159, v159, v129')
    I('v_cvt_pk_bf16_f32 v158, v158, v159')
    I('ds_write_b32 v21, v158')
    I('s_waitcnt lgkmcnt(0)')
    I('s_barrier')
    for kt in range(16):
        I('ds_read_b128 %s, v22 offset:%d' % (V(168 + kt * 4, 4), kt * 64))
        if kt == 14:
            pass
    for kt in range(16):
        I('s_waitcnt lgkmcnt(%d)' % min(15, 15 - kt))
        mfma(150, 32 + kt * 4, 168 + kt * 4, None if kt == 0 else 150)
    I('v_permlane32_swap_b32 v150, v151')
    I('v_permlane32_swap_b32 v152, v153')
    rnd2(150, 152, 154)
    rnd2(151, 153, 154)
    K0 = 0.7978845608028654
    for (gx, t) in ((150, 156), (152, 158)):
        I('v_mul_f32 %s, %s, %s' % (V(t), V(gx), V(gx)))
        I('v_mul_f32 %s, %s, %s' % (V(t), V(t), V(gx)))
        I('v_mov_b32 %s, %s' % (V(t + 1), f32(0.044715)))
        I('v_fma_f32 %s, %s, %s, %s' % (V(t), V(t), V(t + 1), V(gx)))
        I('v_mul_f32 %s, %s, %s' % (V(t), f32(-2.0 * K0 * LOG2E), V(t)))
        I('v_exp_f32 %s, %s' % (V(t), V(t)))
        I('v_add_f32 %s, 1.0, %s' % (V(t), V(t)))
        I('v_rcp_f32 %s, %s' % (V(t), V(t)))
        I('v_mul_f32 %s, %s, %s' % (V(gx), V(gx), V(t)))
    rnd2(150, 152, 154)
    I('v_mul_f32 v150, v150, v151')
    I('v_mul_f32 v152, v152, v153')
    I('v_cvt_pk_bf16_f32 v150, v150, v152')
    I('s_mov_b64 exec, %s' % P(sJ0))
    I('ds_write_b16 v23, v150')
    I('ds_write_b16_d16_hi v23, v150 offset:4')
    I('s_mov_b64 exec, -1')
    I('s_waitcnt lgkmcnt(0)')
    I('s_barrier')
    for j in range(8):
        I('ds_read_b128 %s, %s' % (V(168 + j * 4, 4), V(140 + j)))
    for j in range(8):
        I('s_waitcnt lgkmcnt(%d)' % (7 - j))
        mfma(150, 96 + j * 4, 168 + j * 4, None if j == 0 else 150)
    tagit(154, 150, 4)
    I('s_mov_b32 exec_lo, 0x00ff00ff')
    I('s_mov_b32 exec_hi, 0x00ff00ff')
    I('global_store_dwordx4 v9, v[154:157], %s sc1' % P(pWS))
    I('s_mov_b64 exec, -1')
    stamp(5)
    I('s_endpgm')

    A.label('L_H')
    I('s_cmp_lg_u32 s%d, 0' % sW)
    I('s_cbranch_scc1 L_exit')
    for i in range(4):
        I('v_lshlrev_b32 %s, 16, %s' % (V(32 + 2 * i), V(24 + i)))
        I('v_and_b32 %s, s%d, %s' % (V(33 + 2 * i), sHI, V(24 + i)))
    I('v_readfirstlane_b32 s77, v32')
    for i in range(8):
        I('v_subrev_f32 %s, s77, %s' % (V(32 + i), V(32 + i)))
    I('v_add_f32 v40, v32, v33')
    I('v_mul_f32 v41, v32, v32')
    I('v_fmac_f32 v41, v33, v33')
    for i in range(2, 8):
        I('v_add_f32 v40, v40, %s' % V(32 + i))
        I('v_fmac_f32 v41, %s, %s' % (V(32 + i), V(32 + i)))
    row_allreduce('v_add_f32', 40)
    row_allreduce('v_add_f32', 41)
    I('v_permlane32_swap_b32 v40, v41')
    I('v_add_f32 v40, v40, v41')
    I('v_mov_b32 v41, v40')
    I('v_permlane16_swap_b32 v40, v41')
    I('v_add_f32 v40, v40, v41')
    I('v_readlane_b32 s78, v40, 0')
    I('v_readlane_b32 s80, v40, 32')
    ln_finish(77, 78, 80, 42)
    I('v_lshlrev_b32 v28, 16, v28')
    I('v_sub_f32 v28, v28, v42')
    rnd(28)
    I('v_mul_f32 v28, v28, v43')
    rnd(28)
    I('s_lshl_b32 s77, s%d, 11' % sG)
    I('s_add_u32 s77, s77, %d' % R1)
    I('v_lshl_add_u32 v2, v1, 2, s77')
    I('s_lshl_b32 s77, s%d, 8' % sG)
    I('s_add_u32 s77, s77, %d' % R2)
    I('v_lshl_add_u32 v3, v1, 2, s77')
    poll([(48 + a, 1, 2, a * 256, 11, 0) for a in range(8)], True)
    stamp(2)
    I('v_add_f32 v48, v48, v50')
    I('v_add_f32 v49, v49, v51')
    I('v_add_f32 v52, v52, v54')
    I('v_add_f32 v53, v53, v55')
    I('v_add_f32 v48, v48, v52')
    I('v_add_f32 v49, v49, v53')
    rnd2(48, 49, 50)
    I('v_add_f32 v49, 1.0, v49')
    rnd(49)
    I('v_mul_f32 v28, v28, v49')
    rnd(28)
    I('v_add_f32 v28, v28, v48')
    I('v_cvt_pk_bf16_f32 v28, v28, v28')
    tagit(28, 28, 1, 11, 0)
    I('global_store_dword v3, v28, %s sc1' % P(pWS))
    stamp(3)
    I('s_endpgm')


def ln_finish(sx0, sS1, sS2, d):
    I('v_mov_b32 %s, %s' % (V(d + 2), f32(1.0 / 512)))
    I('v_mul_f32 %s, s%d, %s' % (V(d), sS1, V(d + 2)))
    I('v_mul_f32 %s, s%d, %s' % (V(d + 1), sS2, V(d + 2)))
    I('v_fma_f32 %s, -%s, %s, %s' % (V(d + 1), V(d), V(d), V(d + 1)))
    I('v_max_f32 %s, 0, %s' % (V(d + 1), V(d + 1)))
    I('v_add_f32 %s, s%d, %s' % (V(d), sx0, V(d)))
    rnd2(d, d + 1, d + 2)
    I('v_add_f32 %s, %s, %s' % (V(d + 1), f32(1e-5), V(d + 1)))
    rnd(d + 1)
    I('v_sqrt_f32 %s, %s' % (V(d + 1), V(d + 1)))
    rnd(d + 1)
    I('v_rcp_f32 %s, %s' % (V(d + 1), V(d + 1)))


def gen_B():
    LW = 0
    LW2 = 65536
    LX = 98304
    LX2 = LX + 1024
    A.label('L_B')
    code_prefetch('L_B', 'L_T', 20, 22)
    srd(48, pWQ, 512 * 8192)
    srd(52, pWM, 512 * 6144)
    I('s_sub_u32 s74, s%d, 16' % sR)
    addr128_dma(8192, 4, 5, 6)
    I('s_lshl_b32 s77, s%d, 20' % sW)
    I('s_lshl_b32 s78, s%d, 10' % sG)
    I('s_add_u32 s77, s77, s78')
    I('s_lshl_b32 s78, s74, 7')
    I('s_add_u32 s77, s77, s78')
    I('s_lshl_b32 s78, s%d, 14' % sW)
    dma128(48, 8192, 16, 77, 78, 4, 5)
    I('s_lshl_b32 s75, s%d, 3' % sG)
    I('s_add_u32 s75, s75, s74')
    I('s_and_b32 s76, s75, 1')
    I('s_lshl_b32 s77, s76, 9')
    I('v_and_b32 v2, 127, v0')
    I('v_lshl_add_u32 v3, v2, 2, s77')
    I('global_load_dword v24, v3, %s' % P(pC))
    addr128_tr(7, LW, 8)
    I('v_and_b32 v8, 48, v1')
    I('v_add_u32 v8, %d, v8' % LX)
    addr128_dma(6144, 14, 15, 16)
    get_tag()
    I('s_lshl_b32 s77, s%d, 9' % sW)
    I('s_add_u32 s77, s77, %d' % R2)
    I('v_lshl_add_u32 v9, v1, 2, s77')
    I('s_lshl_b32 s77, s%d, 8' % sW)
    I('s_add_u32 s77, s77, %d' % LX)
    I('v_lshl_add_u32 v18, v1, 1, s77')
    I('s_lshl_b32 s77, s75, 8')
    I('s_lshl_b32 s78, s%d, 6' % sW)
    I('s_add_u32 s77, s77, s78')
    I('v_and_b32 v19, 48, v1')
    I('v_add_u32 v19, s77, v19')
    I('s_waitcnt vmcnt(0)')
    silu_pair(24, 25, 26, 27, 24)
    I('v_lshlrev_b32 v2, 2, v2')
    I('v_add_u32 v2, %d, v2' % LX2)
    I('ds_write_b32 v2, v24')
    I('s_barrier')
    stamp(1)
    for kt in range(16):
        I('ds_read_b64_tr_b16 %s, v7 offset:%d' % (V(32 + kt * 4, 2), kt * 4096))
        I('ds_read_b64_tr_b16 %s, v7 offset:%d' % (V(34 + kt * 4, 2), kt * 4096 + 512))
        if kt % 4 == 3:
            I('s_waitcnt lgkmcnt(0)')
    poll([(24, 1, 9, 0, 11, 0), (25, 1, 9, 256, 11, 0)], False)
    stamp(2)
    I('ds_write_b16_d16_hi v18, v24')
    I('ds_write_b16_d16_hi v18, v25 offset:128')
    I('s_waitcnt lgkmcnt(0)')
    I('s_barrier')
    for kt in range(16):
        I('ds_read_b128 %s, v8 offset:%d' % (V(96 + kt * 4, 4), kt * 64))
    I('v_add_u32 v2, %d, v19' % R3)
    for kt in range(16):
        I('s_waitcnt lgkmcnt(%d)' % (15 - kt))
        mfma(24, 32 + kt * 4, 96 + kt * 4, None if kt == 0 else 24)
    for t in range(4):
        I('v_cvt_pk_bf16_f32 %s, %s, %s' % (V(24 + t), V(24 + t), V(24 + t)))
    tagit(28, 24, 4)
    I('s_mov_b64 exec, %s' % P(sJ0))
    I('global_store_dwordx4 v2, v[28:31], %s' % P(pWS))
    I('global_store_dwordx4 v2, v[28:31], %s sc1' % P(sWSG))
    I('s_mov_b64 exec, -1')
    stamp(3)
    I('s_lshl_b32 s77, s76, 8')
    I('s_lshl_b32 s78, s%d, 6' % sW)
    I('s_add_u32 s77, s77, s78')
    I('s_mul_i32 s77, s77, 6144')
    I('s_lshr_b32 s78, s75, 1')
    I('s_lshl_b32 s78, s78, 7')
    I('s_add_u32 s77, s77, s78')
    I('s_add_u32 s77, s77, 2048')
    I('s_lshl_b32 s78, s%d, 13' % sW)
    I('s_add_u32 s78, s78, %d' % LW2)
    dma128(52, 6144, 8, 77, 78, 14, 15)
    for kt in range(8):
        I('ds_read_b128 %s, v8 offset:%d' % (V(96 + kt * 4, 4), 1024 + kt * 64))
    I('v_add_u32 v7, %d, v7' % LW2)
    I('v_add_u32 v2, %d, v19' % R7)
    I('s_waitcnt vmcnt(0)')
    I('s_barrier')
    for kt in range(8):
        I('ds_read_b64_tr_b16 %s, v7 offset:%d' % (V(32 + kt * 4, 2), kt * 4096))
        I('ds_read_b64_tr_b16 %s, v7 offset:%d' % (V(34 + kt * 4, 2), kt * 4096 + 512))
        if kt % 4 == 3:
            I('s_waitcnt lgkmcnt(0)')
    for kt in range(8):
        mfma(24, 32 + kt * 4, 96 + kt * 4, None if kt == 0 else 24)
    tagit(28, 24, 4)
    I('s_mov_b64 exec, %s' % P(sJ0))
    I('global_store_dwordx4 v2, v[28:31], %s sc1' % P(pWS))
    I('s_mov_b64 exec, -1')
    stamp(4)
    I('s_endpgm')


def gen_T():
    LV = 0
    LWO = 65536
    CBS = 528
    LCB = 0
    LCB = 98304
    LCB = 0
    CBW = 16384
    LQ = 98304
    LZ = LQ + 1280
    LST = LZ + 256
    LO = LST + 128
    KF = 16
    VF = 80
    QF = 144
    SD = 176
    PP = 184
    A.label('L_T')
    code_prefetch('L_T', 'L_codeend', 200, 202)
    srd(48, pK, 0x8000000)
    srd(52, pV, 0x8000000)
    srd(56, pWO, 4096 * 1024)
    I('v_and_b32 v2, 15, v1')
    I('v_lshlrev_b32 v2, 8, v2')
    I('v_and_b32 v3, 48, v1')
    I('v_add_u32 v2, v2, v3')
    I('s_lshl_b32 s74, s%d, 24' % sG)
    I('s_lshl_b32 s75, s%d, 16' % sR)
    I('s_add_u32 s74, s74, s75')
    I('s_lshl_b32 s75, s%d, 14' % sW)
    I('s_add_u32 s74, s74, s75')
    I('s_add_u32 s74, s74, 0xF00000')
    I('s_mov_b32 s76, s74')
    for tt in range(4):
        for s in range(4):
            I('buffer_load_dwordx4 %s, v2, %s, s76 offen offset:%d nt' % (V(KF + (tt * 4 + s) * 4, 4), S4(48), 64 * s))
        if tt != 3:
            I('s_add_u32 s76, s76, 4096')
    I('v_lshrrev_b32 v5, 4, v1')
    I('v_lshlrev_b32 v6, 1, v5')
    I('v_and_b32 v7, 15, v1')
    I('v_xor_b32 v6, v6, v7')
    I('v_lshlrev_b32 v6, 4, v6')
    I('v_lshl_add_u32 v3, v5, 8, v6')
    I('v_xor_b32 v4, 128, v3')
    I('s_mov_b32 m0, s75')
    I('s_mov_b32 s76, s74')
    for i in range(16):
        I('buffer_load_dwordx4 %s, %s, s76 offen nt lds' % (V(4 if (i & 1) else 3), S4(52)))
        if i != 15:
            I('s_add_u32 m0, m0, 1024')
            I('s_add_u32 s76, s76, 1024')
    I('v_lshl_add_u32 v196, v5, 10, v6')
    I('v_xor_b32 v197, 128, v196')
    I('v_mov_b32 v8, 0')
    I('v_lshlrev_b32 v9, 2, v1')
    I('v_add_u32 v9, %d, v9' % LZ)
    I('ds_write_b32 v9, v8')
    I('v_lshrrev_b32 v5, 2, v1')
    I('v_lshlrev_b32 v6, 8, v5')
    I('v_and_b32 v5, 7, v5')
    I('v_lshl_add_u32 v6, v5, 5, v6')
    I('v_and_b32 v5, 3, v1')
    I('v_lshl_add_u32 v6, v5, 3, v6')
    I('v_add_u32 v6, s75, v6')
    I('v_and_b32 v5, 3, v1')
    I('v_mul_u32_u24 v5, 320, v5')
    I('v_and_b32 v9, 48, v1')
    I('v_add3_u32 v5, v5, v9, 0')
    I('v_add_u32 v5, %d, v5' % LQ)
    I('v_mov_b32 v9, %d' % LZ)
    I('v_and_b32 v14, 8, v1')
    I('v_cmp_eq_u32 %s, 0, v14' % P(86))
    I('v_cndmask_b32 v7, v9, v5, %s' % P(86))
    I('v_cndmask_b32 v8, v5, v9, %s' % P(86))
    I('v_and_b32 v14, 4, v1')
    I('v_cmp_ne_u32 %s, 0, v14' % P(88))
    get_tag()
    I('s_lshl_b32 s77, s%d, 11' % sG)
    I('s_lshl_b32 s78, s%d, 9' % sW)
    I('s_add_u32 s77, s77, s78')
    I('s_add_u32 s77, s77, %d' % R3)
    I('v_lshl_add_u32 v9, v1, 2, s77')
    I('s_mul_i32 s77, s%d, 320' % sW)
    I('s_add_u32 s77, s77, %d' % LQ)
    I('v_lshl_add_u32 v14, v1, 1, s77')
    I('v_and_b32 v5, 15, v1')
    I('v_mul_u32_u24 v15, %d, v5' % CBS)
    I('v_and_b32 v5, 48, v1')
    I('v_add3_u32 v15, v15, v5, s75')
    I('s_mov_b32 s90, %s' % f32(128 ** -0.5))
    I('s_mov_b32 s91, %s' % f32(128 ** -0.5))
    I('s_mov_b32 s92, %s' % f32(LOG2E))
    I('s_waitcnt vmcnt(0)')
    stamp(1)
    for u in range(2):
        for dt in range(8):
            I('v_xor_b32 v5, %d, v6' % (dt << 5))
            I('ds_read_b64_tr_b16 %s, v5 offset:%d' % (V(VF + (u * 8 + dt) * 4, 2), u * 8192))
            I('ds_read_b64_tr_b16 %s, v5 offset:%d' % (V(VF + (u * 8 + dt) * 4 + 2, 2), u * 8192 + 4096))
            if dt % 4 == 3:
                I('s_waitcnt lgkmcnt(0)')
    poll([(198, 1, 9, 0, 11, 0), (199, 1, 9, 256, 11, 0)], True)
    stamp(2)
    I('ds_write_b16_d16_hi v14, v198')
    I('ds_write_b16_d16_hi v14, v199 offset:128')
    I('s_lshr_b32 s79, s%d, 2' % sR)
    I('s_and_b32 s80, s%d, 3' % sR)
    I('s_lshl_b32 s76, s%d, 19' % sG)
    I('s_lshl_b32 s77, s79, 17')
    I('s_add_u32 s76, s76, s77')
    I('s_lshl_b32 s77, s%d, 15' % sW)
    I('s_add_u32 s76, s76, s77')
    I('s_lshl_b32 s77, s80, 8')
    I('s_add_u32 s76, s76, s77')
    I('s_lshl_b32 s77, s%d, 13' % sW)
    I('s_add_u32 s77, s77, %d' % LWO)
    I('s_mov_b32 m0, s77')
    I('s_waitcnt lgkmcnt(0)')
    I('s_barrier')
    for u in range(2):
        for s in range(4):
            I('ds_read_b128 %s, %s offset:%d' % (V(QF + (u * 4 + s) * 4, 4), V(7 + u), 64 * s))
    for i in range(8):
        I('buffer_load_dwordx4 %s, %s, s76 offen nt lds' % (V(197 if (i & 2) else 196), S4(56)))
        if i != 7:
            I('s_add_u32 m0, m0, 1024')
            I('s_add_u32 s76, s76, 4096')
    n = 0
    for u in range(2):
        for s in range(4):
            I('s_waitcnt lgkmcnt(%d)' % (7 - n))
            for a in range(2):
                mfma(SD + 4 * a, KF + ((u * 2 + a) * 4 + s) * 4, QF + (u * 4 + s) * 4, None if n == 0 else SD + 4 * a)
            n += 1
    X = SD
    for i in range(0, 8, 2):
        rnd2(X + i, X + i + 1, 200)
        I('v_pk_mul_f32 %s, %s, s[90:91]' % (V(X + i, 2), V(X + i, 2)))
        rnd2(X + i, X + i + 1, 200)
    I('v_max3_f32 v200, %s, %s, %s' % (V(X), V(X + 1), V(X + 2)))
    I('v_max3_f32 v201, %s, %s, %s' % (V(X + 3), V(X + 4), V(X + 5)))
    I('v_max3_f32 v200, v200, %s, %s' % (V(X + 6), V(X + 7)))
    I('v_max_f32 v200, v200, v201')
    I('v_max_f32_dpp v200, v200, v200 row_ror:8 %s' % DPPM)
    xrow_allreduce('v_max_f32', 200, 201)
    I('v_mul_f32 v201, s92, v200')
    for i in range(8):
        I('v_fma_f32 %s, %s, s92, -v201' % (V(X + i), V(X + i)))
        I('v_exp_f32 %s, %s' % (V(X + i), V(X + i)))
    for i in range(8):
        I('v_and_b32 %s, s%d, %s' % (V(204 + i), sHI, V(X + i)))
        I('v_sub_f32 %s, %s, %s' % (V(212 + i), V(X + i), V(204 + i)))
        I('v_cndmask_b32 %s, %s, %s, %s' % (V(204 + i), V(204 + i), V(212 + i), P(88)))
    for i in range(4):
        I('v_cvt_pk_bf16_f32 %s, %s, %s' % (V(PP + i), V(204 + 2 * i), V(205 + 2 * i)))
    for i in range(4):
        I('v_cndmask_b32 %s, 0, %s, %s' % (V(PP + 4 + i), V(PP + i), P(86)))
    for i in range(4):
        I('v_cndmask_b32 %s, %s, 0, %s' % (V(PP + 8 + i), V(PP + i), P(86)))
    OA = KF
    for dt in range(8):
        mfma(OA + dt * 4, VF + dt * 4, PP + 4, None)
    I('v_add_f32 v202, %s, %s' % (V(X), V(X + 1)))
    I('v_add_f32 v203, %s, %s' % (V(X + 2), V(X + 3)))
    I('v_add_f32 v204, %s, %s' % (V(X + 4), V(X + 5)))
    I('v_add_f32 v205, %s, %s' % (V(X + 6), V(X + 7)))
    I('v_add_f32 v202, v202, v203')
    I('v_add_f32 v204, v204, v205')
    for dt in range(8):
        mfma(OA + dt * 4, VF + (8 + dt) * 4, PP + 8, OA + dt * 4)
    I('v_add_f32 v201, v202, v204')
    I('v_add_f32_dpp v201, v201, v201 row_ror:8 %s' % DPPM)
    xrow_allreduce('v_add_f32', 201, 202)
    I('s_lshl_b32 s77, s%d, 3' % sW)
    I('s_add_u32 s77, s77, %d' % LST)
    I('v_lshl_add_u32 v5, v1, 5, s77')
    I('s_mov_b64 exec, 15')
    I('ds_write_b64 v5, v[200:201]')
    I('s_mov_b64 exec, -1')
    for dt in range(8):
        I('ds_write_b128 v15, %s offset:%d' % (V(OA + dt * 4, 4), dt * 64))
    I('s_mul_i32 s77, s%d, %d' % (sW, CBS))
    I('v_lshl_add_u32 v5, v1, 3, s77')
    I('s_lshl_b32 s77, s%d, 5' % sW)
    I('s_add_u32 s77, s77, %d' % LST)
    I('v_mov_b32 v6, s77')
    I('s_lshl_b32 s77, s%d, 16' % sG)
    I('s_lshl_b32 s78, s%d, 14' % sW)
    I('s_add_u32 s77, s77, s78')
    I('s_lshl_b32 s78, s%d, 10' % sR)
    I('s_add_u32 s77, s77, s78')
    I('s_add_u32 s77, s77, %d' % R4)
    I('v_lshl_add_u32 v7, v1, 3, s77')
    I('s_waitcnt lgkmcnt(0)')
    I('s_barrier')
    I('ds_read_b128 v[200:203], v6')
    I('ds_read_b128 v[204:207], v6 offset:16')
    for sw in range(4):
        for c4 in range(4):
            I('ds_read_b64 %s, v5 offset:%d' % (V(80 + (sw * 4 + c4) * 2, 2), sw * CBW + c4 * 4 * CBS))
    I('s_waitcnt lgkmcnt(15)')
    I('s_waitcnt lgkmcnt(14)')
    I('v_max3_f32 v208, v200, v202, v204')
    I('v_max_f32 v208, v208, v206')
    for sw in range(4):
        I('v_sub_f32 %s, %s, v208' % (V(200 + 2 * sw), V(200 + 2 * sw)))
        I('v_mul_f32 %s, s92, %s' % (V(200 + 2 * sw), V(200 + 2 * sw)))
        I('v_exp_f32 %s, %s' % (V(200 + 2 * sw), V(200 + 2 * sw)))
    I('v_mul_f32 v209, v200, v201')
    I('v_fmac_f32 v209, v202, v203')
    I('v_fmac_f32 v209, v204, v205')
    I('v_fmac_f32 v209, v206, v207')
    for sw in range(4):
        I('s_waitcnt lgkmcnt(%d)' % (12 - 4 * sw))
        b = 80 + sw * 8
        I('v_pk_add_f32 %s, %s, %s' % (V(b, 2), V(b, 2), V(b + 2, 2)))
        I('v_pk_add_f32 %s, %s, %s' % (V(b + 4, 2), V(b + 4, 2), V(b + 6, 2)))
        I('v_pk_add_f32 %s, %s, %s' % (V(b, 2), V(b, 2), V(b + 4, 2)))
        if sw == 0:
            I('v_mul_f32 v210, v200, %s' % V(b))
            I('v_mul_f32 v211, v200, %s' % V(b + 1))
        else:
            I('v_fmac_f32 v210, %s, %s' % (V(200 + 2 * sw), V(b)))
            I('v_fmac_f32 v211, %s, %s' % (V(200 + 2 * sw), V(b + 1)))
    tagit(210, 210, 2, 12, 0)
    tagit(208, 208, 2, 10, 0)
    I('global_store_dwordx2 v7, v[210:211], %s' % P(pWS))
    I('s_mov_b64 exec, 1')
    I('global_store_dwordx2 v7, v[208:209], %s offset:512' % P(pWS))
    I('global_store_dwordx2 v7, v[208:209], %s offset:512 sc1' % P(sWSG))
    I('s_mov_b64 exec, -1')
    I('global_store_dwordx2 v7, v[210:211], %s sc1' % P(sWSG))
    stamp(3)
    I('s_lshl_b32 s77, s%d, 16' % sG)
    I('s_lshl_b32 s78, s79, 14')
    I('s_add_u32 s77, s77, s78')
    I('s_add_u32 s77, s77, %d' % R4)
    I('v_lshrrev_b32 v5, 3, v1')
    I('v_lshl_add_u32 v5, v5, 10, s77')
    I('v_add_u32 v6, 8192, v5')
    I('v_and_b32 v7, 7, v1')
    I('s_lshl_b32 s78, s%d, 7' % sW)
    I('v_lshl_add_u32 v7, v7, 4, s78')
    I('v_add_u32 v8, v6, v7')
    I('v_add_u32 v7, v5, v7')
    I('v_lshrrev_b32 v2, 4, v1')
    I('v_bfe_u32 v3, v1, 2, 2')
    I('v_lshl_add_u32 v4, v2, 3, v3')
    I('v_lshlrev_b32 v4, 8, v4')
    I('v_and_b32 v2, 1, v2')
    I('v_lshl_or_b32 v2, v2, 2, v3')
    I('s_lshl_b32 s78, s%d, 1' % sW)
    I('v_xor_b32 v2, s78, v2')
    I('v_lshl_add_u32 v4, v2, 5, v4')
    I('v_and_b32 v2, 3, v1')
    I('v_lshl_add_u32 v4, v2, 3, v4')
    I('v_add_u32 v4, %d, v4' % LWO)
    I('v_xor_b32 v3, 32, v4')
    I('v_and_b32 v2, 7, v1')
    I('v_lshlrev_b32 v2, 3, v2')
    I('v_lshrrev_b32 v9, 4, v1')
    I('v_lshl_add_u32 v2, v9, 1, v2')
    I('s_lshl_b32 s78, s%d, 6' % sW)
    I('s_add_u32 s78, s78, %d' % LO)
    I('v_add_u32 v2, s78, v2')
    I('v_and_b32 v9, 48, v1')
    I('v_add_u32 v9, %d, v9' % LO)
    I('v_mov_b32 v14, %d' % LZ)
    I('v_and_b32 v15, 15, v1')
    I('v_cmp_eq_u32 vcc, 0, v15')
    I('v_cndmask_b32 v196, v14, v9, vcc')
    I('v_cmp_eq_u32 vcc, 1, v15')
    I('v_cndmask_b32 v197, v14, v9, vcc')
    I('s_lshl_b32 s77, s80, 14')
    I('s_lshl_b32 s78, s%d, 12' % sW)
    I('s_add_u32 s77, s77, s78')
    I('s_lshl_b32 s78, s%d, 9' % sG)
    I('s_add_u32 s77, s77, s78')
    I('s_lshl_b32 s78, s79, 7')
    I('s_add_u32 s77, s77, s78')
    I('s_add_u32 s77, s77, %d' % R5)
    I('v_and_b32 v9, 48, v1')
    I('v_lshl_add_u32 v9, v15, 6, v9')
    I('v_add_u32 v9, s77, v9')
    I('s_waitcnt vmcnt(0)')
    I('s_barrier')
    WF = 48
    for c2 in range(2):
        for kt in range(4):
            I('ds_read_b64_tr_b16 %s, %s offset:%d' % (V(WF + (c2 * 4 + kt) * 4, 2), V(3 if c2 else 4), kt * 8192))
            I('ds_read_b64_tr_b16 %s, %s offset:%d' % (V(WF + (c2 * 4 + kt) * 4 + 2, 2), V(3 if c2 else 4), kt * 8192 + 1024))
        I('s_waitcnt lgkmcnt(0)')
    poll([(80, 4, 7, 0, 10, 0), (84, 4, 8, 0, 10, 0), (88, 2, 5, 512, 10, 0), (90, 2, 6, 512, 10, 0)], True)
    stamp(4)
    I('v_and_b32 v88, s%d, v88' % sHI)
    I('v_and_b32 v90, s%d, v90' % sHI)
    I('v_max_f32 v92, v88, v90')
    I('v_max_f32_dpp v92, v92, v92 row_ror:8 %s' % DPPM)
    xrow_allreduce('v_max_f32', 92, 93)
    for x in (88, 90):
        I('v_sub_f32 %s, %s, v92' % (V(x), V(x)))
        I('v_mul_f32 %s, s92, %s' % (V(x), V(x)))
        I('v_exp_f32 %s, %s' % (V(x), V(x)))
    I('v_mul_f32 v92, v88, v89')
    I('v_fmac_f32 v92, v90, v91')
    for t in range(4):
        I('v_mul_f32 %s, v88, %s' % (V(80 + t), V(80 + t)))
        I('v_fmac_f32 %s, v90, %s' % (V(80 + t), V(84 + t)))
    I('v_add_f32_dpp v92, v92, v92 row_ror:8 %s' % DPPM)
    xrow_reduce4(80)
    xrow_allreduce('v_add_f32', 92, 93)
    I('v_add_f32_dpp v80, v80, v80 row_ror:8 %s' % DPPM)
    I('v_rcp_f32 v92, v92')
    I('v_mul_f32 v80, v80, v92')
    I('v_cvt_pk_bf16_f32 v80, v80, v80')
    I('ds_write_b16 v2, v80')
    I('s_waitcnt lgkmcnt(0)')
    I('s_barrier')
    for c2 in range(2):
        for kt in range(4):
            I('ds_read_b128 %s, %s offset:%d' % (V(96 + (c2 * 4 + kt) * 4, 4), V(196 + c2), kt * 64))
    for n in range(8):
        I('s_waitcnt lgkmcnt(%d)' % (7 - n))
        mfma(80, WF + n * 4, 96 + n * 4, None if n == 0 else 80)
    tagit(84, 80, 4)
    I('s_mov_b32 exec_lo, 0x00030003')
    I('s_mov_b32 exec_hi, 0x00030003')
    I('global_store_dwordx4 v9, v[84:87], %s sc1' % P(pWS))
    I('s_mov_b64 exec, -1')
    stamp(5)
    I('s_cmp_lg_u32 s%d, 0' % sW)
    I('s_cbranch_scc1 L_exit')
    I('v_and_b32 v2, 7, v1')
    I('v_lshrrev_b32 v3, 4, v1')
    I('v_lshl_add_u32 v4, v2, 2, v3')
    I('v_lshlrev_b32 v3, 3, v3')
    I('v_lshrrev_b32 v13, v3, v10')
    I('s_lshl_b32 s77, s%d, 6' % sR)
    I('v_lshl_add_u32 v5, v4, 1, s77')
    I('global_load_ushort v20, v5, %s' % P(pX))
    I('s_lshr_b32 s77, s%d, 1' % sR)
    I('s_lshl_b32 s77, s77, 9')
    I('s_and_b32 s78, s%d, 1' % sR)
    I('s_lshl_b32 s78, s78, 7')
    I('s_add_u32 s77, s77, s78')
    I('s_add_u32 s77, s77, %d' % R7)
    I('v_lshl_add_u32 v6, v4, 2, s77')
    I('v_add_u32 v7, %d, v6' % (24 * 512))
    poll([(21, 1, 6, 0, 13, 0), (22, 1, 6, 256, 13, 0), (23, 1, 7, 0, 13, 0), (24, 1, 7, 256, 13, 0)], False)
    I('v_add_f32 v21, v21, v22')
    I('v_add_f32 v23, v23, v24')
    rnd2(21, 23, 22)
    I('v_lshlrev_b32 v20, 16, v20')
    I('s_lshl_b32 s77, s%d, 12' % sR)
    I('s_add_u32 s77, s77, %d' % R5)
    I('v_lshl_add_u32 v8, v1, 4, s77')
    I('s_lshl_b32 s77, s%d, 11' % sG)
    I('s_lshl_b32 s78, s%d, 7' % sR)
    I('s_add_u32 s77, s77, s78')
    I('s_add_u32 s77, s77, %d' % R6)
    I('v_lshl_add_u32 v9, v4, 2, s77')
    I('s_lshl_b32 s77, s%d, 13' % sR)
    I('s_add_u32 s77, s77, %d' % R8)
    I('v_lshl_add_u32 v14, v1, 4, s77')
    I('v_add_u32 v15, 4096, v14')
    poll([(32 + 4 * u, 4, 8, 1024 * u, 10, 0) for u in range(4)], False)
    stamp(6)
    for t in range(0, 4, 2):
        I('v_pk_add_f32 %s, %s, %s' % (V(32 + t, 2), V(32 + t, 2), V(36 + t, 2)))
        I('v_pk_add_f32 %s, %s, %s' % (V(40 + t, 2), V(40 + t, 2), V(44 + t, 2)))
        I('v_pk_add_f32 %s, %s, %s' % (V(32 + t, 2), V(32 + t, 2), V(40 + t, 2)))
    xrow_reduce4(32)
    I('v_add_f32_dpp v32, v32, v32 row_ror:8 %s' % DPPM)
    rnd(32)
    I('v_mul_f32 v32, v32, v21')
    rnd(32)
    I('v_add_f32 v32, v32, v20')
    I('v_cvt_pk_bf16_f32 v32, v32, v32')
    tagit(33, 32, 1, 13, 0)
    I('s_mov_b32 exec_lo, 0x00ff00ff')
    I('s_mov_b32 exec_hi, 0x00ff00ff')
    I('global_store_dword v9, v33, %s' % P(pWS))
    I('global_store_dword v9, v33, %s sc1' % P(sWSG))
    I('s_mov_b64 exec, -1')
    stamp(7)
    I('v_and_b32 v20, s%d, v32' % sHI)
    I('s_and_b32 s77, s%d, 7' % sR)
    I('s_cmp_lg_u32 s77, s%d' % sG)
    I('s_cbranch_scc1 L_exit')
    poll([(32 + 4 * u, 4, 14 if u < 4 else 15, 1024 * (u & 3), 10, 0) for u in range(7)], False)
    stamp(8)
    for t in range(0, 4, 2):
        I('v_pk_add_f32 %s, %s, %s' % (V(32 + t, 2), V(32 + t, 2), V(36 + t, 2)))
        I('v_pk_add_f32 %s, %s, %s' % (V(40 + t, 2), V(40 + t, 2), V(44 + t, 2)))
        I('v_pk_add_f32 %s, %s, %s' % (V(48 + t, 2), V(48 + t, 2), V(52 + t, 2)))
        I('v_pk_add_f32 %s, %s, %s' % (V(32 + t, 2), V(32 + t, 2), V(56 + t, 2)))
        I('v_pk_add_f32 %s, %s, %s' % (V(40 + t, 2), V(40 + t, 2), V(48 + t, 2)))
        I('v_pk_add_f32 %s, %s, %s' % (V(32 + t, 2), V(32 + t, 2), V(40 + t, 2)))
    xrow_reduce4(32)
    I('v_add_f32_dpp v32, v32, v32 row_ror:8 %s' % DPPM)
    rnd(32)
    I('v_mul_f32 v32, v32, v23')
    rnd(32)
    I('v_add_f32 v32, v32, v20')
    I('v_cvt_pk_bf16_f32 v32, v32, v32')
    I('s_mov_b32 exec_lo, 0x00ff00ff')
    I('s_mov_b32 exec_hi, 0x00ff00ff')
    I('global_store_short v5, v32, %s' % P(pOUT))
    I('s_mov_b64 exec, -1')
    stamp(9)
    I('s_cmp_lg_u32 s2, 0')
    I('s_cbranch_scc1 L_exit')
    I('v_mov_b32 v2, 0')
    I('s_mov_b64 exec, 1')
    I('global_store_dword v2, v10, %s sc1' % P(pWS))


gen()
open(OUT, 'w').write(A.text())
print('wrote', OUT, len(A.out), 'lines')
```
